```python
import torch

def _softmax(x, axis=-1):
    return torch.softmax(x, dim=axis)
def _gelu(x):
    return torch.nn.functional.gelu(x, approximate="tanh")
def _silu(x):
    return torch.nn.functional.silu(x)
def _sigmoid(x):
    return torch.sigmoid(x)
def _layernorm(x, axis=-1, eps=1e-5):
    m = x.mean(dim=axis, keepdim=True)
    v = x.var(dim=axis, keepdim=True, unbiased=False)
    return (x - m) / torch.sqrt(v + eps)
def _scatter_add(tgt, idx, src, axis=0):
    return tgt.clone().index_add_(axis, idx, src)
def _segment_sum(src, seg, n):
    out = torch.zeros((n,) + src.shape[1:], dtype=src.dtype)
    return out.index_add_(0, seg, src)
def _pad(x, pw):
    flat = tuple(v for pair in reversed(pw) for v in pair)
    return torch.nn.functional.pad(x, flat)

kernel_name = 'concat_heads__gqa_block_cached__mha_block_cached__near_ridge'

def setup_inputs():

    _w = (lambda a: (lambda t: t.to(torch.bfloat16) if t.is_floating_point() else t)(torch.as_tensor(a)))
    def _A_setup():
        B, Sq, D = 8, 192, 640
        Hq, Hkv, Sk, Dh = 32, 32, 512, 128
        assert Hq % Hkv == 0, (Hq, Hkv)
        return {
            "x": _w((lambda *s: torch.randn(*s, dtype=torch.bfloat16) * 0.8)(B, Sq, D)),
            "k_cache": _w((lambda *s: torch.randn(*s, dtype=torch.bfloat16) * 0.8)(B, Hkv, Sk, Dh)),
            "v_cache": _w((lambda *s: torch.randn(*s, dtype=torch.bfloat16) * 0.05)(B, Hkv, Sk, Dh)),
            "wq": _w((lambda *s: torch.randn(*s, dtype=torch.bfloat16) * 0.8)(D, Hq * Dh) * (D ** -0.5)),
            "wo": _w((lambda *s: torch.randn(*s, dtype=torch.bfloat16) * 0.05)(Hq * Dh, D) * ((Hq * Dh) ** -0.5)),
        }
    _A_in = _A_setup()

    def _B_setup():
        B, Sq, D = 8, 192, 640
        H, Sk, Dh = 32, 512, 128
        return {
            "x": _w((lambda *s: torch.randn(*s, dtype=torch.bfloat16) * 0.8)(B, Sq, D)),
            "k_cache": _w((lambda *s: torch.randn(*s, dtype=torch.bfloat16) * 0.8)(B, H, Sk, Dh)),
            "v_cache": _w((lambda *s: torch.randn(*s, dtype=torch.bfloat16) * 0.05)(B, H, Sk, Dh)),
            "wq": _w((lambda *s: torch.randn(*s, dtype=torch.bfloat16) * 0.8)(D, H * Dh) * (D ** -0.5)),
            "wo": _w((lambda *s: torch.randn(*s, dtype=torch.bfloat16) * 0.05)(H * Dh, D) * ((H * Dh) ** -0.5)),
        }
    _B_in = _B_setup()

    return {
        "A_x": _A_in["x"],
        "A_k_cache": _A_in["k_cache"],
        "A_v_cache": _A_in["v_cache"],
        "A_wq": _A_in["wq"],
        "A_wo": _A_in["wo"],
        "B_x": _B_in["x"],
        "B_k_cache": _B_in["k_cache"],
        "B_v_cache": _B_in["v_cache"],
        "B_wq": _B_in["wq"],
        "B_wo": _B_in["wo"],
    }

def reference(A_x, A_k_cache, A_v_cache, A_wq, A_wo, B_x, B_k_cache, B_v_cache, B_wq, B_wo):
    def _A_ref(x, k_cache, v_cache, wq, wo):
        B, Sq, D = x.shape
        Hq, Dh = 32, 128
        Hkv = k_cache.shape[1]
        rep = Hq // Hkv
        q = (lambda x, *d: x.permute(*d))((x @ wq).reshape(B, Sq, Hq, Dh), 0, 2, 1, 3)
        k = (lambda x, n, axis: torch.repeat_interleave(x, n, dim=axis))(k_cache, rep, axis=1)
        v = (lambda x, n, axis: torch.repeat_interleave(x, n, dim=axis))(v_cache, rep, axis=1)
        scores = torch.einsum("bhqd,bhkd->bhqk", q, k) * (Dh ** -0.5)
        p = _softmax(scores, axis=-1)
        o = torch.einsum("bhqk,bhkd->bhqd", p, v)
        return (lambda x, *d: x.permute(*d))(o, 0, 2, 1, 3).reshape(B, Sq, Hq * Dh) @ wo

    def _B_ref(x, k_cache, v_cache, wq, wo):
        B, Sq, D = x.shape
        H, Dh = 32, 128
        q = (lambda x, *d: x.permute(*d))((x @ wq).reshape(B, Sq, H, Dh), 0, 2, 1, 3)
        scores = torch.einsum("bhqd,bhkd->bhqk", q, k_cache) * (Dh ** -0.5)
        p = _softmax(scores, axis=-1)
        o = torch.einsum("bhqk,bhkd->bhqd", p, v_cache)
        return (lambda x, *d: x.permute(*d))(o, 0, 2, 1, 3).reshape(B, Sq, H * Dh) @ wo

    a = _A_ref(A_x, A_k_cache, A_v_cache, A_wq, A_wo)
    b = _B_ref(B_x, B_k_cache, B_v_cache, B_wq, B_wo)
    return torch.concatenate([a, b], axis=-1)
```

```python
import re

TRANS = ('v_exp_f32', 'v_log_f32', 'v_rcp_f32', 'v_rsq_f32', 'v_sqrt_f32', 'v_sin_f32', 'v_cos_f32')


def _regs(tok):
    tok = tok.strip()
    neg = tok.startswith('-')
    if neg:
        tok = tok[1:]
    m = re.fullmatch(r'abs\((.*)\)', tok)
    if m:
        tok = m.group(1)
    m = re.fullmatch(r'([vas])(\d+)', tok)
    if m:
        return [(m.group(1), int(m.group(2)))]
    m = re.fullmatch(r'([vas])\[(\d+):(\d+)\]', tok)
    if m:
        return [(m.group(1), i) for i in range(int(m.group(2)), int(m.group(3)) + 1)]
    if tok == 'vcc':
        return [('s', 106), ('s', 107)]
    if tok == 'vcc_lo':
        return [('s', 106)]
    if tok == 'vcc_hi':
        return [('s', 107)]
    if tok == 'm0':
        return [('s', 124)]
    if tok == 'exec':
        return [('s', 126), ('s', 127)]
    return []


class Ins:
    __slots__ = ('text', 'op', 'kind', 'w', 'r', 'passes', 'srcc', 'ab', 'lds_dma', 'wide_store', 'nop')

    def __init__(self, text):
        self.text = text
        t = text.split(';')[0].strip()
        self.nop = 0
        self.passes = 0
        self.srcc = []
        self.ab = []
        self.lds_dma = False
        self.wide_store = False
        if t.endswith(':') or not t or t.startswith('.'):
            self.op = t
            self.kind = 'label' if t.endswith(':') else 'none'
            self.w = []
            self.r = []
            return
        parts = t.split(None, 1)
        op = parts[0]
        self.op = op
        rest = parts[1] if len(parts) > 1 else ''
        ops = []
        depth = 0
        cur = ''
        for ch in rest:
            if ch in '[(':
                depth += 1
            if ch in '])':
                depth -= 1
            if ch == ',' and depth == 0:
                ops.append(cur.strip())
                cur = ''
            else:
                cur += ch
        if cur.strip():
            ops.append(cur.strip())
        mods = []
        if ops:
            sp = ops[-1].split()
            if len(sp) > 1:
                ops[-1] = sp[0]
                mods = sp[1:]
        w = []
        r = []
        if op.startswith('v_mfma'):
            self.kind = 'mfma'
            self.passes = 8 if '32x32' in op else 4
            w = _regs(ops[0])
            self.ab = _regs(ops[1]) + _regs(ops[2])
            self.srcc = _regs(ops[3])
            r = self.ab + self.srcc
        elif op.startswith('v_'):
            self.kind = 'trans' if op.replace('_e32', '').replace('_e64', '') in TRANS else 'valu'
            if op.startswith('v_cmp'):
                w = _regs(ops[0])
                for o in ops[1:]:
                    r += _regs(o)
            elif op.startswith('v_permlane') and 'swap' in op:
                w = _regs(ops[0]) + _regs(ops[1])
                r = list(w)
            elif op.startswith('v_add_co') or op.startswith('v_sub_co') or op.startswith('v_addc_co'):
                w = _regs(ops[0]) + _regs(ops[1])
                for o in ops[2:]:
                    r += _regs(o)
            else:
                w = _regs(ops[0])
                for o in ops[1:]:
                    r += _regs(o)
                if op.startswith('v_fmac') or op.startswith('v_dot2c') or op.startswith('v_cndmask') and len(ops) == 3:
                    r += _regs(ops[0])
                if op.startswith('v_cndmask') and len(ops) == 3:
                    r += _regs('vcc')
                if '_d16' in op:
                    r += _regs(ops[0])
        elif op.startswith('ds_'):
            self.kind = 'ds'
            if op.startswith('ds_read') or op.startswith('ds_bpermute') or op.startswith('ds_swizzle') or op.startswith('ds_permute'):
                w = _regs(ops[0])
                for o in ops[1:]:
                    r += _regs(o)
            else:
                for o in ops:
                    r += _regs(o)
        elif op.startswith('buffer_') or op.startswith('global_'):
            self.kind = 'vmem'
            if 'lds' in mods or '_lds_' in op:
                self.lds_dma = True
                for o in ops:
                    r += _regs(o)
                r += _regs('m0')
            elif '_load' in op:
                w = _regs(ops[0])
                for o in ops[1:]:
                    r += _regs(o)
                if '_d16' in op:
                    r += _regs(ops[0])
            elif '_store' in op or 'atomic' in op:
                for o in ops:
                    r += _regs(o)
                if 'x4' in op or 'x3' in op:
                    self.wide_store = True
            else:
                pass
        elif op.startswith('s_'):
            if op == 's_nop':
                self.kind = 'nop'
                self.nop = int(ops[0], 0) + 1
            elif op in ('s_waitcnt', 's_barrier', 's_endpgm', 's_setprio', 's_sleep') or op.startswith('s_cbranch') or op == 's_branch':
                self.kind = 'ctl'
            elif op.startswith('s_load') or op.startswith('s_memtime') or op.startswith('s_memrealtime'):
                self.kind = 'smem'
                w = _regs(ops[0])
                for o in ops[1:]:
                    r += _regs(o)
            elif op.startswith('s_cmp') or op.startswith('s_bitcmp'):
                self.kind = 'salu'
                for o in ops:
                    r += _regs(o)
            else:
                self.kind = 'salu'
                w = _regs(ops[0])
                for o in ops[1:]:
                    r += _regs(o)
        else:
            raise ValueError('unknown instruction: ' + text)
        self.w = w
        self.r = r


def _need(prod, cons):
    need = 0
    pw = set(prod.w)
    if prod.kind == 'mfma':
        p8 = prod.passes == 8
        if cons.kind == 'mfma':
            if pw & set(cons.ab):
                need = max(need, 12 if p8 else 8)
            ov = pw & set(cons.srcc)
            if ov:
                if set(cons.srcc) == pw and cons.passes == prod.passes:
                    pass
                else:
                    need = max(need, 10 if p8 else 6)
            if pw & set(cons.w) and not (set(cons.srcc) == pw):
                need = max(need, 10 if p8 else 6)
        elif cons.kind in ('valu', 'trans', 'ds', 'vmem'):
            if pw & (set(cons.r) | set(cons.w)):
                need = max(need, 12 if p8 else 8)
        if cons.kind in ('valu', 'trans'):
            if set(prod.srcc) & set(cons.w):
                need = max(need, 7 if p8 else 3)
    elif prod.kind in ('valu', 'trans'):
        vw = {x for x in pw if x[0] in 'va'}
        sw = {x for x in pw if x[0] == 's'}
        if cons.kind == 'mfma' and vw & set(cons.r):
            need = max(need, 2)
        if prod.kind == 'trans' and cons.kind in ('valu', 'mfma', 'ds', 'vmem') and vw & set(cons.r):
            need = max(need, 1)
        if cons.kind in ('valu', 'trans'):
            if cons.op.startswith('v_permlane') and vw & set(cons.r):
                need = max(need, 2)
            if (cons.op.startswith('v_readfirstlane') or cons.op.startswith('v_readlane')) and vw & set(cons.r):
                need = max(need, 1)
            if 'dpp' in cons.text and vw & set(cons.r):
                need = max(need, 2)
            if sw & set(cons.r):
                need = max(need, 2)
            if cons.op.startswith('v_readlane') and sw & set(cons.r):
                need = max(need, 4)
        if cons.kind == 'vmem' and sw & set(cons.r):
            need = max(need, 5)
        if cons.kind in ('salu', 'smem') and sw & set(cons.r):
            need = max(need, 1)
        if cons.kind == 'ctl' and cons.op.startswith('s_cbranch_vcc') and sw & {('s', 106), ('s', 107)}:
            need = max(need, 1)
    elif prod.kind == 'salu':
        if ('s', 124) in pw and cons.kind == 'vmem' and cons.lds_dma:
            need = max(need, 1)
        if pw & {('s', 126), ('s', 127)} and cons.kind == 'mfma':
            need = max(need, 0)
    elif prod.kind == 'vmem':
        if prod.wide_store:
            data = set(prod.r)
            if cons.kind in ('valu', 'trans') and data & {x for x in cons.w if x[0] in 'va'}:
                need = max(need, 2)
            elif cons.kind in ('ds', 'vmem', 'mfma') and data & {x for x in cons.w if x[0] in 'va'}:
                need = max(need, 1)
    return need


MAXD = 12


class Asm:
    def __init__(self):
        self.items = []

    def __call__(self, text):
        for line in text.strip('\n').split('\n'):
            line = line.strip()
            if not line:
                continue
            self.items.append(Ins(line))

    def label(self, name):
        self.items.append(Ins(name + ':'))

    def comment(self, text):
        i = Ins('')
        i.text = '; ' + text
        self.items.append(i)

    def finalize(self):
        out = []
        hist = []

        def age(n):
            nonlocal hist
            hist = [(i, d + n) for (i, d) in hist if d + n < MAXD + 1]

        def drain():
            need = 0
            for (p, d) in hist:
                if p.kind == 'mfma':
                    req = 12 if p.passes == 8 else 8
                elif p.kind in ('valu', 'trans'):
                    req = 5 if any(x[0] == 's' for x in p.w) else 2
                elif p.kind == 'salu':
                    req = 1 if ('s', 124) in p.w else 0
                elif p.kind == 'vmem' and p.wide_store:
                    req = 2
                else:
                    req = 0
                need = max(need, req - d)
            return need

        def put_nops(n):
            while n > 0:
                k = min(n, 16)
                ins = Ins('s_nop %d' % (k - 1))
                out.append(ins)
                age(k)
                n -= k

        for ins in self.items:
            if ins.kind == 'none':
                out.append(ins)
                continue
            if ins.kind == 'label':
                put_nops(drain())
                out.append(ins)
                hist = []
                continue
            need = 0
            for (p, d) in hist:
                need = max(need, _need(p, ins) - d)
            if ins.kind == 'ctl' and (ins.op.startswith('s_cbranch') or ins.op == 's_branch'):
                need = max(need, drain() - 1)
            put_nops(need)
            out.append(ins)
            age(ins.nop if ins.kind == 'nop' else 1)
            hist.append((ins, 0))
        self.items = out
        return '\n'.join(('' if i.kind == 'label' else '  ') + i.text for i in out) + '\n'
```

```python
import sys
from asmlib import Asm

NAME = 'concat_heads__gqa_block_cached__mha_block_cached__near_ridge'
WS_O = 0
WS_WO = 2 * 96 * 128 * 1024
WS_BYTES_USED = WS_WO + 2 * 40 * 128 * 1024
WS_DBG = 64 << 20

DEBUG_Q = '--debug-q' in sys.argv


def vr(base, n):
    return 'v[%d:%d]' % (base, base + n - 1)


def ar(base, n):
    return 'a[%d:%d]' % (base, base + n - 1)


def sr(base, n):
    return 's[%d:%d]' % (base, base + n - 1)


def kernel1():
    a = Asm()
    S_X, S_WQ, S_KV, S_WO, S_WS = 8, 12, 16, 20, 24
    s_wv, s_blk, s_b, s_hp, s_hh, s_qt = 28, 29, 30, 31, 32, 33
    s_t0, s_t1, s_t2, s_t3 = 34, 35, 36, 37
    s_c = 38
    s_ldr = 39
    s_wqoff, s_xoff = 40, 41
    s_cnt = 42
    s_kvoff = 43
    s_kvlds = 44
    s_slot = 45
    s_lslot = 46
    s_P = 48
    v_lane = 1
    v_wql = 2
    v_xla, v_xlb = 3, 4
    v_xr = 5
    v_wr = 13
    v_kvl = 15
    v_kr = 19
    v_vr = 20
    v_m, v_l, v_ls = 21, 22, 23
    v_t = 24
    V_Q = 32
    V_ACC = 64
    V_F = 128
    V_S = 128
    V_FR = 144

    XOFF = [0, 57344]
    WOFF = [24576, 57344 + 24576]

    a.label(NAME + '_kernel')
    a(f'''
    s_cmp_ge_u32 s2, 256
    s_cbranch_scc1 K1_END
    s_load_dwordx16 s[48:63], s[0:1], 0
    s_load_dwordx8 s[64:71], s[0:1], 64
    s_load_dwordx2 s[72:73], s[0:1], 96
    v_and_b32 v{v_lane}, 63, v0
    v_lshrrev_b32 v{v_t}, 6, v0
    v_readfirstlane_b32 s{s_wv}, v{v_t}
    s_and_b32 s{s_t0}, s2, 7
    s_lshr_b32 s{s_t1}, s2, 3
    s_lshr_b32 s{s_blk}, s{s_t0}, 2
    s_and_b32 s{s_t0}, s{s_t0}, 3
    s_and_b32 s{s_b}, s{s_t1}, 7
    s_lshr_b32 s{s_t1}, s{s_t1}, 3
    s_lshl_b32 s{s_t0}, s{s_t0}, 2
    s_add_u32 s{s_hp}, s{s_t0}, s{s_t1}
    s_cmp_ge_u32 s{s_wv}, 6
    s_cselect_b32 s{s_hh}, 1, 0
    s_mul_i32 s{s_t0}, s{s_hh}, 6
    s_sub_u32 s{s_qt}, s{s_wv}, s{s_t0}
    s_mov_b32 s{s_c}, 0x3e0293ee
    s_waitcnt lgkmcnt(0)
    s_cmp_eq_u32 s{s_blk}, 0
    ''')
    for i in range(10):
        a(f's_cselect_b32 s{48+i}, s{48+i}, s{58+i}')
    a(f'''
    s_mul_i32 s{s_t0}, s{s_b}, 245760
    s_add_u32 s{S_X}, s48, s{s_t0}
    s_addc_u32 s{S_X+1}, s49, 0
    s_mov_b32 s{S_X+2}, 245760
    s_mov_b32 s{S_X+3}, 0x00020000
    s_lshl_b32 s{s_t0}, s{s_hp}, 9
    s_add_u32 s{S_WQ}, s54, s{s_t0}
    s_addc_u32 s{S_WQ+1}, s55, 0
    s_sub_u32 s{S_WQ+2}, 5242880, s{s_t0}
    s_mov_b32 s{S_WQ+3}, 0x00020000
    s_mov_b32 s{S_WO}, s56
    s_mov_b32 s{S_WO+1}, s57
    s_mov_b32 s{S_WO+2}, 5242880
    s_mov_b32 s{S_WO+3}, 0x00020000
    s_mov_b32 s{S_WS}, s72
    s_mov_b32 s{S_WS+1}, s73
    s_mov_b32 s{S_WS+2}, 0x10000000
    s_mov_b32 s{S_WS+3}, 0x00020000
    ''')
    a(f'''
    s_lshl_b32 s{s_t0}, s{s_b}, 5
    s_lshl_b32 s{s_t1}, s{s_hp}, 1
    s_add_u32 s{s_t0}, s{s_t0}, s{s_t1}
    s_lshl_b32 s{s_t0}, s{s_t0}, 17
    s_cmp_lt_u32 s{s_wv}, 4
    s_cselect_b32 s{s_t1}, s50, s52
    s_cselect_b32 s{s_t2}, s51, s53
    s_add_u32 s{S_KV}, s{s_t1}, s{s_t0}
    s_addc_u32 s{S_KV+1}, s{s_t2}, 0
    s_mov_b32 s{S_KV+2}, 262144
    s_mov_b32 s{S_KV+3}, 0x00020000
    s_cmp_lt_u32 s{s_wv}, 8
    s_cselect_b32 s{s_ldr}, 1, 0
    ''')
    L = v_lane
    t = v_t
    a(f'''
    v_lshrrev_b32 v{t}, 4, v{L}
    v_bfe_u32 v{t+1}, v{L}, 2, 2
    v_and_b32 v{t+2}, 3, v{L}
    v_lshlrev_b32 v{t+3}, 6, v{t}
    v_lshl_add_u32 v{t+3}, v{t+2}, 4, v{t+3}
    v_lshl_add_u32 v{v_wql}, v{t+1}, 13, v{t+3}
    v_lshl_add_u32 v{t+4}, v{t+1}, 8, v{t+3}
    ''')
    a(f'''
    v_and_b32 v{t+5}, 15, v{L}
    v_xor_b32 v{t+5}, v{t+5}, v{t}
    v_lshlrev_b32 v{t+5}, 4, v{t+5}
    v_lshl_add_u32 v{t+5}, v{t}, 8, v{t+5}
    s_cmp_lt_u32 s{s_wv}, 4
    s_cselect_b64 vcc, -1, 0
    ''')
    for i in range(4):
        a(f'''
        v_xor_b32 v{t+6}, {64*i}, v{t+5}
        v_cndmask_b32 v{v_kvl+i}, v{t+4}, v{t+6}, vcc
        ''')
    a(f'''
    v_lshrrev_b32 v{t+1}, 3, v{L}
    v_mul_u32_u24 v{t+1}, 1280, v{t+1}
    v_and_b32 v{t+2}, 7, v{L}
    v_xor_b32 v{t+2}, v{t+2}, v{t}
    v_lshl_add_u32 v{t+1}, v{t+2}, 4, v{t+1}
    s_and_b32 s{s_t0}, s{s_wv}, 1
    s_lshl_b32 s{s_t0}, s{s_t0}, 6
    v_xor_b32 v{v_xla}, s{s_t0}, v{t+1}
    v_xor_b32 v{v_xlb}, 64, v{v_xla}
    ''')
    a(f'''
    v_and_b32 v{t+1}, 31, v{L}
    v_lshrrev_b32 v{t+2}, 5, v{L}
    v_bfe_u32 v{t+3}, v{L}, 1, 3
    v_xor_b32 v{t+3}, v{t+3}, v{t+2}
    v_lshlrev_b32 v{t+3}, 4, v{t+3}
    v_lshl_add_u32 v{t+3}, v{t+1}, 7, v{t+3}
    s_lshl_b32 s{s_t0}, s{s_qt}, 12
    v_add_u32 v{t+3}, s{s_t0}, v{t+3}
    ''')
    for ks in range(4):
        a(f'v_xor_b32 v{v_xr+ks}, {32*ks}, v{t+3}')
        a(f'v_add_u32 v{v_xr+4+ks}, {XOFF[1]}, v{v_xr+ks}')
    a(f'''
    v_bfe_u32 v{t+3}, v{L}, 2, 2
    v_lshlrev_b32 v{t+3}, 6, v{t+3}
    v_lshl_add_u32 v{t+3}, v{t+2}, 12, v{t+3}
    v_bfe_u32 v{t+4}, v{L}, 4, 1
    v_lshl_add_u32 v{t+3}, v{t+4}, 5, v{t+3}
    v_and_b32 v{t+4}, 1, v{L}
    v_lshl_add_u32 v{t+5}, v{t+4}, 4, v{t+3}
    v_bfe_u32 v{t+4}, v{L}, 1, 1
    v_lshl_add_u32 v{t+5}, v{t+4}, 3, v{t+5}
    s_lshl_b32 s{s_t0}, s{s_hh}, 10
    s_add_u32 s{s_t0}, s{s_t0}, {WOFF[0]}
    v_add_u32 v{v_wr}, s{s_t0}, v{t+5}
    v_add_u32 v{v_wr+1}, {WOFF[1]-WOFF[0]}, v{v_wr}
    ''')
    a(f'''
    v_bfe_u32 v{t+4}, v{L}, 2, 2
    v_lshlrev_b32 v{t+4}, 6, v{t+4}
    v_lshl_add_u32 v{t+4}, v{t+2}, 10, v{t+4}
    v_bfe_u32 v{t+5}, v{L}, 4, 1
    v_lshl_add_u32 v{t+4}, v{t+5}, 5, v{t+4}
    v_and_b32 v{t+5}, 3, v{L}
    v_lshl_add_u32 v{t+4}, v{t+5}, 3, v{t+4}
    s_lshl_b32 s{s_t0}, s{s_hh}, 13
    s_add_u32 s{s_t1}, s{s_t0}, 16384
    v_add_u32 v{v_vr}, s{s_t1}, v{t+4}
    ''')
    a(f'''
    v_and_b32 v{t+4}, 15, v{L}
    v_xor_b32 v{t+4}, v{t+4}, v{t+2}
    v_lshlrev_b32 v{t+4}, 4, v{t+4}
    v_lshl_add_u32 v{t+4}, v{t+1}, 8, v{t+4}
    v_add_u32 v{v_kr}, s{s_t0}, v{t+4}
    ''')

    a(f'''
    s_cmp_ge_u32 s{s_wv}, 10
    s_cbranch_scc1 K1_NOPREP
    v_and_b32 v{t+3}, 15, v{L}
    v_lshlrev_b32 v{t+3}, 1, v{t+3}
    v_bfe_u32 v{t+4}, v{L}, 4, 1
    v_mul_u32_u24 v{t+4}, {16*1280}, v{t+4}
    v_add_u32 v{t+3}, v{t+3}, v{t+4}
    v_mul_u32_u24 v{t+4}, {4*1280}, v{t+2}
    v_add_u32 v{t+3}, v{t+3}, v{t+4}
    s_mul_i32 s{s_t0}, s{s_hp}, {256*1280}
    s_mul_i32 s{s_t1}, s{s_b}, 160
    s_add_u32 s{s_t0}, s{s_t0}, s{s_t1}
    ''')
    for f in range(4):
        a(f'''
        s_lshl_b32 s{s_t1}, s{s_wv}, 2
        s_add_u32 s{s_t1}, s{s_t1}, {f}
        s_mul_i32 s{s_t2}, s{s_t1}, 52
        s_lshr_b32 s{s_t2}, s{s_t2}, 8
        s_mul_i32 s{s_t3}, s{s_t2}, 5
        s_sub_u32 s{s_t3}, s{s_t1}, s{s_t3}
        s_mul_i32 s{s_t2}, s{s_t2}, {32*1280}
        s_lshl_b32 s{s_t3}, s{s_t3}, 5
        s_add_u32 s{s_t2}, s{s_t2}, s{s_t3}
        s_add_u32 s{s_t2}, s{s_t2}, s{s_t0}
        s_add_u32 s{s_t3}, s{s_t2}, {8*1280}
        ''')
        for j in range(8):
            so = s_t2 if j < 4 else s_t3
            a(f'buffer_load_ushort v{V_Q+8*f+j}, v{t+3}, {sr(S_WO,4)}, s{so} offen offset:{(j%4)*1280}')
    a.label('K1_NOPREP')

    def q_loads(slot):
        for k in range(4):
            a(f'''
            s_lshl_b32 s{s_t0}, s{s_wv}, 12
            s_add_u32 m0, s{s_t0}, {WOFF[slot] + 1024*k}
            s_add_u32 s{s_t1}, s{s_wqoff}, {(k//2)*4*8192 + (k%2)*256}
            buffer_load_dwordx4 v{v_wql}, {sr(S_WQ,4)}, s{s_t1} offen lds
            ''')
        for k in range(3):
            a(f'''
            s_mul_i32 s{s_t0}, s{s_wv}, 3072
            s_add_u32 m0, s{s_t0}, {XOFF[slot] + 1024*k}
            s_add_u32 s{s_t1}, s{s_xoff}, {k*8*1280}
            buffer_load_dwordx4 v{v_xla if k != 1 else v_xlb}, {sr(S_X,4)}, s{s_t1} offen lds
            ''')
        a(f'''
        s_add_u32 s{s_wqoff}, s{s_wqoff}, {64*8192}
        s_add_u32 s{s_xoff}, s{s_xoff}, 128
        ''')

    def kv_loads():
        for k in range(4):
            a(f'''
            s_add_u32 s{s_t0}, s{s_lslot}, s{s_kvlds}
            s_add_u32 m0, s{s_t0}, {1024*k}
            s_add_u32 s{s_t1}, s{s_kvoff}, {1024*k}
            buffer_load_dwordx4 v{v_kvl+k}, {sr(S_KV,4)}, s{s_t1} offen lds
            ''')
        a(f's_add_u32 s{s_kvoff}, s{s_kvoff}, 8192')

    a(f'''
    s_lshl_b32 s{s_wqoff}, s{s_wv}, 16
    s_mul_i32 s{s_xoff}, s{s_wv}, {24*1280}
    s_bfe_u32 s{s_t0}, s{s_wv}, 0x10001
    s_and_b32 s{s_t1}, s{s_wv}, 1
    s_lshl_b32 s{s_kvoff}, s{s_t0}, 17
    s_lshl_b32 s{s_t2}, s{s_t1}, 12
    s_add_u32 s{s_kvoff}, s{s_kvoff}, s{s_t2}
    s_lshr_b32 s{s_t3}, s{s_wv}, 2
    s_lshl_b32 s{s_kvlds}, s{s_t3}, 14
    s_lshl_b32 s{s_t0}, s{s_t0}, 13
    s_add_u32 s{s_kvlds}, s{s_kvlds}, s{s_t0}
    s_add_u32 s{s_kvlds}, s{s_kvlds}, s{s_t2}
    s_mov_b32 s{s_lslot}, {4*32768}
    s_cmp_eq_u32 s{s_ldr}, 0
    s_cbranch_scc1 K1_NOLD0
    ''')
    q_loads(0)
    kv_loads()
    a.label('K1_NOLD0')
    for i in range(64):
        a(f'v_mov_b32 v{V_ACC+i}, 0')

    AF = [V_F, V_F + 20]

    def q_reads(slot, ks, st):
        base = AF[st]
        a(f'ds_read_b128 {vr(base+16,4)}, v{v_xr+4*slot+ks}')
        for T in range(4):
            for n in range(2):
                a(f'ds_read_b64_tr_b16 {vr(base+4*T+2*n,2)}, v{v_wr+slot} offset:{(4*ks+n)*2048+T*256}')

    def q_mfma(st):
        base = AF[st]
        for T in range(4):
            a(f'v_mfma_f32_32x32x16_bf16 {vr(V_ACC+16*T,16)}, {vr(base+4*T,4)}, {vr(base+16,4)}, {vr(V_ACC+16*T,16)}')

    a(f's_mov_b32 s{s_cnt}, 0')
    a.label('K1_QLOOP')
    for slot in range(2):
        if slot == 0:
            a(f'''
            s_cmp_eq_u32 s{s_cnt}, 0
            s_cbranch_scc0 K1_QW1
            s_waitcnt vmcnt(4)
            s_branch K1_QW2
            ''')
            a.label('K1_QW1')
            a('s_waitcnt vmcnt(0)')
            a.label('K1_QW2')
        else:
            a('s_waitcnt vmcnt(0)')
        a('s_barrier')
        lab = f'K1_QNL{slot}'
        a(f's_cmp_eq_u32 s{s_ldr}, 0')
        a(f's_cbranch_scc1 {lab}')
        if slot == 1:
            a(f's_cmp_eq_u32 s{s_cnt}, 4')
            a(f's_cbranch_scc1 {lab}')
        q_loads(1 - slot)
        a.label(lab)
        q_reads(slot, 0, 0)
        q_reads(slot, 1, 1)
        a('s_waitcnt lgkmcnt(9)')
        q_mfma(0)
        q_reads(slot, 2, 0)
        a('s_waitcnt lgkmcnt(9)')
        q_mfma(1)
        q_reads(slot, 3, 1)
        a('s_waitcnt lgkmcnt(9)')
        q_mfma(0)
        a('s_waitcnt lgkmcnt(0)')
        q_mfma(1)
    a(f'''
    s_add_u32 s{s_cnt}, s{s_cnt}, 1
    s_cmp_lt_u32 s{s_cnt}, 5
    s_cbranch_scc1 K1_QLOOP
    ''')

    a(f'''
    s_cmp_ge_u32 s{s_wv}, 10
    s_cbranch_scc1 K1_NOPREP2
    s_waitcnt vmcnt(0)
    v_lshlrev_b32 v{t}, 4, v{L}
    s_mul_i32 s{s_t0}, s{s_blk}, 40
    s_mul_i32 s{s_t1}, s{s_b}, 5
    s_add_u32 s{s_t0}, s{s_t0}, s{s_t1}
    ''')
    for f in range(4):
        a(f'''
        s_lshl_b32 s{s_t1}, s{s_wv}, 2
        s_add_u32 s{s_t1}, s{s_t1}, {f}
        s_mul_i32 s{s_t2}, s{s_t1}, 52
        s_lshr_b32 s{s_t2}, s{s_t2}, 8
        s_mul_i32 s{s_t3}, s{s_t2}, 5
        s_sub_u32 s{s_t3}, s{s_t1}, s{s_t3}
        s_add_u32 s{s_t3}, s{s_t3}, s{s_t0}
        s_lshl_b32 s{s_t3}, s{s_t3}, 7
        s_add_u32 s{s_t3}, s{s_t3}, s{s_t2}
        s_lshl_b32 s{s_t2}, s{s_hp}, 3
        s_add_u32 s{s_t3}, s{s_t3}, s{s_t2}
        s_lshl_b32 s{s_t3}, s{s_t3}, 10
        s_add_u32 s{s_t3}, s{s_t3}, {WS_WO}
        ''')
        for jj in range(4):
            a(f'v_lshl_or_b32 v{V_Q+8*f+jj}, v{V_Q+8*f+2*jj+1}, 16, v{V_Q+8*f+2*jj}')
        a(f'buffer_store_dwordx4 {vr(V_Q+8*f,4)}, v{t}, {sr(S_WS,4)}, s{s_t3} offen')
    a.label('K1_NOPREP2')

    a('s_barrier')
    a(f's_cmp_eq_u32 s{s_ldr}, 0')
    a('s_cbranch_scc1 K1_NOLD1')
    for j in range(1, 4):
        a(f's_mov_b32 s{s_lslot}, {(j-1)*32768}')
        kv_loads()
    a.label('K1_NOLD1')

    for T in range(4):
        for u in range(2):
            for i in range(4):
                a(f'v_cvt_pk_bf16_f32 v{V_Q+8*T+4*u+i}, v{V_ACC+16*T+8*u+2*i}, v{V_ACC+16*T+8*u+2*i+1}')
    if DEBUG_Q:
        a(f'''
        v_lshlrev_b32 v{t}, 4, v{L}
        s_mul_i32 s{s_t0}, s2, 12
        s_add_u32 s{s_t0}, s{s_t0}, s{s_wv}
        s_lshl_b32 s{s_t0}, s{s_t0}, 13
        s_add_u32 s{s_t0}, s{s_t0}, {WS_DBG}
        ''')
        for k in range(8):
            a(f'''
            s_add_u32 s{s_t1}, s{s_t0}, {1024*k}
            buffer_store_dwordx4 {vr(V_Q+4*k,4)}, v{t}, {sr(S_WS,4)}, s{s_t1} offen
            ''')
    for i in range(64):
        a(f'v_mov_b32 v{V_ACC+i}, 0')
    a(f'''
    v_mov_b32 v{v_m}, 0xff800000
    v_mov_b32 v{v_l}, 0
    s_mov_b32 s{s_slot}, {4*32768}
    s_mov_b32 s{s_lslot}, {3*32768}
    s_mov_b32 s{s_cnt}, 0
    ''')

    FR = [V_FR + 4 * i for i in range(6)]
    v_ka = v_t
    v_kb = v_t + 1
    v_va = v_t + 3
    v_x = v_t + 4

    def qk():
        a(f'v_add_u32 v{v_ka}, s{s_slot}, v{v_kr}')
        def rd(ks):
            r = v_kb + (ks % 2)
            if ks == 0:
                a(f'ds_read_b128 {vr(FR[ks%6],4)}, v{v_ka}')
            else:
                a(f'v_xor_b32 v{r}, {32*ks}, v{v_ka}')
                a(f'ds_read_b128 {vr(FR[ks%6],4)}, v{r}')
        for ks in range(6):
            rd(ks)
        for ks in range(8):
            issued = min(8, 6 + ks)
            a(f's_waitcnt lgkmcnt({issued - 1 - ks})')
            c = '0' if ks == 0 else vr(V_S, 16)
            a(f'v_mfma_f32_32x32x16_bf16 {vr(V_S,16)}, {vr(FR[ks%6],4)}, {vr(V_Q+4*ks,4)}, {c}')
            if ks + 6 < 8:
                rd(ks + 6)

    def expsum():
        for i in range(16):
            a(f'v_fma_f32 v{V_S+i}, v{V_S+i}, s{s_c}, -v{v_m}')
        for i in range(16):
            a(f'v_exp_f32 v{V_S+i}, v{V_S+i}')
        a(f'v_add_f32 v{v_ls}, v{V_S}, v{V_S+1}')
        a(f'v_add_f32 v{v_x}, v{V_S+2}, v{V_S+3}')
        for i in range(4, 16, 2):
            a(f'v_add_f32 v{v_ls}, v{v_ls}, v{V_S+i}')
            a(f'v_add_f32 v{v_x}, v{v_x}, v{V_S+i+1}')
        a(f'v_add_f32 v{v_ls}, v{v_ls}, v{v_x}')

    def v_reads(idx):
        u, T = idx // 4, idx % 4
        for n in range(2):
            a(f'ds_read_b64_tr_b16 {vr(FR[idx%6]+2*n,2)}, v{v_va} offset:{(4*u+2*n)*1024+T*256}')

    a.label('K1_ALOOP')
    a(f'''
    s_cmp_ge_u32 s{s_cnt}, 13
    s_cbranch_scc1 K1_AW1
    s_waitcnt vmcnt(12)
    s_branch K1_AW2
    ''')
    a.label('K1_AW1')
    a('s_waitcnt vmcnt(0)')
    a.label('K1_AW2')
    a('s_barrier')
    a(f'''
    s_cmp_eq_u32 s{s_ldr}, 0
    s_cbranch_scc1 K1_ANL
    s_cmp_ge_u32 s{s_cnt}, 12
    s_cbranch_scc1 K1_ANL
    ''')
    kv_loads()
    a.label('K1_ANL')
    a(f'''
    s_add_u32 s{s_lslot}, s{s_lslot}, 32768
    s_cmp_eq_u32 s{s_lslot}, {5*32768}
    s_cselect_b32 s{s_lslot}, 0, s{s_lslot}
    ''')
    qk()
    a(f'v_add_u32 v{v_va}, s{s_slot}, v{v_vr}')
    for idx in range(6):
        v_reads(idx)
    expsum()
    a(f'''
    v_cmp_nge_f32 vcc, 0x49800000, v{v_ls}
    s_cbranch_vccnz K1_SLOW
    ''')
    a.label('K1_ACONT')
    a(f'v_add_f32 v{v_l}, v{v_l}, v{v_ls}')
    for u in range(2):
        for i in range(4):
            a(f'v_cvt_pk_bf16_f32 v{V_S+8*u+i}, v{V_S+8*u+2*i}, v{V_S+8*u+2*i+1}')
    for idx in range(8):
        u, T = idx // 4, idx % 4
        issued = min(8, 6 + idx)
        a(f's_waitcnt lgkmcnt({2*(issued - 1 - idx)})')
        a(f'v_mfma_f32_32x32x16_bf16 {vr(V_ACC+16*T,16)}, {vr(FR[idx%6],4)}, {vr(V_S+8*u,4)}, {vr(V_ACC+16*T,16)}')
        if idx + 6 < 8:
            v_reads(idx + 6)
    a(f'''
    s_add_u32 s{s_slot}, s{s_slot}, 32768
    s_cmp_eq_u32 s{s_slot}, {5*32768}
    s_cselect_b32 s{s_slot}, 0, s{s_slot}
    s_add_u32 s{s_cnt}, s{s_cnt}, 1
    s_cmp_lt_u32 s{s_cnt}, 16
    s_cbranch_scc1 K1_ALOOP
    s_branch K1_EPI
    ''')
    a.label('K1_SLOW')
    a('s_waitcnt lgkmcnt(0)')
    qk()
    a(f'v_max3_f32 v{v_x}, v{V_S}, v{V_S+1}, v{V_S+2}')
    for i in range(3, 15, 2):
        a(f'v_max3_f32 v{v_x}, v{v_x}, v{V_S+i}, v{V_S+i+1}')
    a(f'''
    v_max_f32 v{v_x}, v{v_x}, v{V_S+15}
    v_mov_b32 v{v_x+1}, v{v_x}
    v_permlane32_swap_b32 v{v_x}, v{v_x+1}
    v_max_f32 v{v_x}, v{v_x}, v{v_x+1}
    v_mul_f32 v{v_x}, s{s_c}, v{v_x}
    v_max_f32 v{v_x}, v{v_x}, v{v_m}
    v_sub_f32 v{v_x+1}, v{v_m}, v{v_x}
    v_exp_f32 v{v_x+1}, v{v_x+1}
    v_mov_b32 v{v_m}, v{v_x}
    v_mul_f32 v{v_l}, v{v_l}, v{v_x+1}
    ''')
    for i in range(64):
        a(f'v_mul_f32 v{V_ACC+i}, v{V_ACC+i}, v{v_x+1}')
    for idx in range(6):
        v_reads(idx)
    expsum()
    a('s_branch K1_ACONT')

    a.label('K1_EPI')
    a(f'''
    v_mov_b32 v{v_x}, v{v_l}
    v_permlane32_swap_b32 v{v_l}, v{v_x}
    v_add_f32 v{v_l}, v{v_l}, v{v_x}
    v_rcp_f32 v{v_l}, v{v_l}
    ''')
    a(f'''
    v_bfe_u32 v{v_x}, v{L}, 4, 1
    v_lshlrev_b32 v{v_x}, 17, v{v_x}
    v_and_b32 v{v_x+1}, 15, v{L}
    v_lshl_add_u32 v{v_x}, v{v_x+1}, 4, v{v_x}
    v_lshrrev_b32 v{v_x+1}, 5, v{L}
    v_lshl_add_u32 v{v_x}, v{v_x+1}, 9, v{v_x}
    s_mul_i32 s{s_t0}, s{s_blk}, 96
    s_mul_i32 s{s_t1}, s{s_b}, 12
    s_add_u32 s{s_t0}, s{s_t0}, s{s_t1}
    s_lshl_b32 s{s_t1}, s{s_qt}, 1
    s_add_u32 s{s_t0}, s{s_t0}, s{s_t1}
    s_lshl_b32 s{s_t0}, s{s_t0}, 7
    s_lshl_b32 s{s_t1}, s{s_hp}, 3
    s_add_u32 s{s_t0}, s{s_t0}, s{s_t1}
    s_lshl_b32 s{s_t1}, s{s_hh}, 2
    s_add_u32 s{s_t0}, s{s_t0}, s{s_t1}
    s_lshl_b32 s{s_t0}, s{s_t0}, 10
    ''')
    for T in range(4):
        for i in range(16):
            a(f'v_mul_f32 v{V_ACC+16*T+i}, v{V_ACC+16*T+i}, v{v_l}')
        for u in range(2):
            for i in range(4):
                a(f'v_cvt_pk_bf16_f32 v{V_Q+8*T+4*u+i}, v{V_ACC+16*T+8*u+2*i}, v{V_ACC+16*T+8*u+2*i+1}')
            a(f'buffer_store_dwordx4 {vr(V_Q+8*T+4*u,4)}, v{v_x}, {sr(S_WS,4)}, s{s_t0} offen offset:{T*1024+u*256}')
    a.label('K1_END')
    a('s_endpgm')
    return a.finalize()


def kernel2():
    a = Asm()
    S_WS, S_OUT = 8, 12
    s_wv, s_blk, s_mt, s_nt = 16, 17, 18, 19
    s_t0, s_t1, s_t2 = 20, 21, 22
    s_cnt = 23
    s_off = 24
    D = 5
    v_l16 = 1
    V_ST = 8
    a.label('outproj_kernel')
    a(f'''
    s_cmp_ge_u32 s2, 256
    s_cbranch_scc1 K2_END
    s_load_dwordx2 s[4:5], s[0:1], 80
    s_load_dwordx2 s[6:7], s[0:1], 96
    v_and_b32 v2, 63, v0
    v_lshrrev_b32 v3, 6, v0
    v_readfirstlane_b32 s{s_wv}, v3
    v_lshlrev_b32 v{v_l16}, 4, v2
    s_and_b32 s{s_t0}, s2, 7
    s_lshr_b32 s{s_t1}, s2, 3
    s_lshr_b32 s{s_blk}, s{s_t0}, 2
    s_and_b32 s{s_t0}, s{s_t0}, 3
    s_lshl_b32 s{s_t0}, s{s_t0}, 2
    s_and_b32 s{s_t2}, s{s_t1}, 3
    s_add_u32 s{s_mt}, s{s_t0}, s{s_t2}
    s_lshr_b32 s{s_nt}, s{s_t1}, 2
    s_waitcnt lgkmcnt(0)
    s_mov_b32 s{S_WS}, s6
    s_mov_b32 s{S_WS+1}, s7
    s_mov_b32 s{S_WS+2}, 0x10000000
    s_mov_b32 s{S_WS+3}, 0x00020000
    s_mov_b32 s{S_OUT}, s4
    s_mov_b32 s{S_OUT+1}, s5
    s_mov_b32 s{S_OUT+2}, {8*192*1280*2}
    s_mov_b32 s{S_OUT+3}, 0x00020000
    ''')
    a(f'''
    s_mul_i32 s{s_t0}, s{s_blk}, 40
    s_mul_i32 s{s_t1}, s{s_nt}, 5
    s_add_u32 s{s_t0}, s{s_t0}, s{s_t1}
    s_lshl_b32 s{s_t0}, s{s_t0}, 17
    s_lshl_b32 s{s_t2}, s{s_wv}, 15
    s_add_u32 s{s_t0}, s{s_t0}, s{s_t2}
    s_add_u32 s{s_t0}, s{s_t0}, {WS_WO}
    ''')
    for i in range(5):
        a(f's_add_u32 s{s_off+i}, s{s_t0}, {i << 17}')
    a(f'''
    s_mul_i32 s{s_t0}, s{s_blk}, 96
    s_mul_i32 s{s_t1}, s{s_mt}, 6
    s_add_u32 s{s_t0}, s{s_t0}, s{s_t1}
    s_lshl_b32 s{s_t0}, s{s_t0}, 17
    s_add_u32 s{s_t0}, s{s_t0}, s{s_t2}
    ''')
    for i in range(6):
        a(f's_add_u32 s{s_off+5+i}, s{s_t0}, {i << 17}')
    for i in range(120):
        a(f'v_accvgpr_write_b32 a{i}, 0')

    def loads(st, imm):
        for i in range(11):
            a(f'buffer_load_dwordx4 {vr(V_ST+44*st+4*i,4)}, v{v_l16}, {sr(S_WS,4)}, s{s_off+i} offen offset:{imm}')

    def mfmas(st):
        b = V_ST + 44 * st
        for q in range(6):
            for n in range(5):
                acc = 4 * (q * 5 + n)
                a(f'v_mfma_f32_16x16x32_bf16 {ar(acc,4)}, {vr(b+4*n,4)}, {vr(b+20+4*q,4)}, {ar(acc,4)}')

    issued = 0

    def issue(k):
        if k % 4 == 0 and k > 0:
            for i in range(11):
                a(f's_add_u32 s{s_off+i}, s{s_off+i}, 4096')
        loads(k % D, (k % 4) * 1024)

    for k in range(D - 1):
        issue(k)
    for k in range(32):
        if k + D - 1 < 32:
            issue(k + D - 1)
            a(f's_waitcnt vmcnt({11*(D-1)})')
        else:
            a(f's_waitcnt vmcnt({11*(31-k)})')
        mfmas(k % D)
    a(f'''
    s_mul_i32 s{s_t0}, s{s_wv}, 30720
    v_add_u32 v3, s{s_t0}, v{v_l16}
    s_nop 7
    ''')
    for tl in range(30):
        a(f'ds_write_b128 v3, {ar(4*tl,4)} offset:{tl*1024}')
    a('s_waitcnt lgkmcnt(0)')
    a('s_barrier')
    a(f'''
    v_and_b32 v4, 15, v2
    v_mul_u32_u24 v4, 2560, v4
    v_lshrrev_b32 v5, 4, v2
    v_lshl_add_u32 v4, v5, 3, v4
    s_mul_i32 s{s_t0}, s{s_mt}, {96*2560}
    s_mul_i32 s{s_t1}, s{s_blk}, 1280
    s_add_u32 s{s_t0}, s{s_t0}, s{s_t1}
    s_mul_i32 s{s_t1}, s{s_nt}, 160
    s_add_u32 s{s_t0}, s{s_t0}, s{s_t1}
    s_lshl_b32 s{s_t2}, s{s_wv}, 10
    v_add_u32 v3, s{s_t2}, v{v_l16}
    ''')
    for i in range(8):
        skip = None
        if i == 7:
            a(f's_cmp_ge_u32 s{s_wv}, 2')
            a('s_cbranch_scc1 K2_END')
        for w in range(4):
            off = w * 30720 + i * 4096
            if off < 65536:
                a(f'ds_read_b128 {vr(16+4*w,4)}, v3 offset:{off}')
            else:
                a(f'v_add_u32 v6, {off}, v3')
                a(f'ds_read_b128 {vr(16+4*w,4)}, v6')
        a(f'''
        s_add_u32 s{s_t1}, s{s_wv}, {4*i}
        s_mul_i32 s{s_t2}, s{s_t1}, 52
        s_lshr_b32 s{s_t2}, s{s_t2}, 8
        s_mul_i32 s30, s{s_t2}, 5
        s_sub_u32 s30, s{s_t1}, s30
        s_mul_i32 s{s_t2}, s{s_t2}, {16*2560}
        s_lshl_b32 s30, s30, 5
        s_add_u32 s{s_t2}, s{s_t2}, s30
        s_add_u32 s{s_t2}, s{s_t2}, s{s_t0}
        s_waitcnt lgkmcnt(0)
        v_pk_add_f32 v[16:17], v[16:17], v[20:21]
        v_pk_add_f32 v[18:19], v[18:19], v[22:23]
        v_pk_add_f32 v[24:25], v[24:25], v[28:29]
        v_pk_add_f32 v[26:27], v[26:27], v[30:31]
        v_pk_add_f32 v[16:17], v[16:17], v[24:25]
        v_pk_add_f32 v[18:19], v[18:19], v[26:27]
        v_cvt_pk_bf16_f32 v32, v16, v17
        v_cvt_pk_bf16_f32 v33, v18, v19
        buffer_store_dwordx2 v[32:33], v4, {sr(S_OUT,4)}, s{s_t2} offen
        ''')
    a.label('K2_END')
    a('s_endpgm')
    return a.finalize()


HEADER = f'''; Kernarg layout: d_in[0..9], d_out, d_debug, d_ws (see the .ref file)
; @launch kernel={NAME}_kernel grid=(256,1,1) block=(768,1,1) lds=163840
; @launch kernel=outproj_kernel grid=(256,1,1) block=(256,1,1) lds=122880
.amdgcn_target "amdgcn-amd-amdhsa--gfx950"
.text
'''


def kd(name, vgpr, sgpr, accum):
    return f'''
.section .rodata,"a"
.p2align 6
.amdhsa_kernel {name}
  .amdhsa_next_free_vgpr {vgpr}
  .amdhsa_next_free_sgpr {sgpr}
  .amdhsa_accum_offset {accum}
  .amdhsa_group_segment_fixed_size 0
  .amdhsa_kernarg_size 104
  .amdhsa_user_sgpr_count 2
  .amdhsa_user_sgpr_kernarg_segment_ptr 1
  .amdhsa_system_sgpr_workgroup_id_x 1
.end_amdhsa_kernel
'''


def main():
    out = HEADER
    for nm, fn in ((NAME + '_kernel', kernel1), ('outproj_kernel', kernel2)):
        out += f'.globl {nm}\n.p2align 8\n.type {nm},@function\n'
        out += fn()
    out += kd(NAME + '_kernel', 168, 96, 168)
    out += kd('outproj_kernel', 256 + 120, 96, 256)
    path = [x for x in sys.argv[1:] if not x.startswith('--')]
    path = path[0] if path else f'cdna_kernels/{NAME}.s'
    open(path, 'w').write(out)
    print('wrote', path, len(out), 'bytes')


main()
```

```python
import sys
from asmlib import Asm

NAME = 'concat_heads__gqa_block_cached__mha_block_cached__near_ridge'
WS_O = 0
WS_WO = 2 * 96 * 128 * 1024
WS_BYTES_USED = WS_WO + 2 * 40 * 128 * 1024
WS_DBG = 64 << 20

DEBUG_Q = '--debug-q' in sys.argv
STAMP = '--stamp' in sys.argv
WS_STAMP = 96 << 20


def vr(base, n):
    return 'v[%d:%d]' % (base, base + n - 1)


def ar(base, n):
    return 'a[%d:%d]' % (base, base + n - 1)


def sr(base, n):
    return 's[%d:%d]' % (base, base + n - 1)


def kernel1():
    a = Asm()
    S_X, S_WQ, S_KV, S_WO, S_WS = 8, 12, 16, 20, 24
    s_wv, s_blk, s_b, s_hp, s_hh, s_qt = 28, 29, 30, 31, 32, 33
    s_t0, s_t1, s_t2, s_t3 = 34, 35, 36, 37
    s_c = 38
    s_ldr = 39
    s_wqoff, s_xoff = 40, 41
    s_cnt = 42
    s_kvoff = 43
    s_kvlds = 44
    s_slot = 45
    s_lslot = 46
    s_kvst = 47
    s_P = 48
    v_lane = 1
    v_wql = 2
    v_xla, v_xlb = 3, 4
    v_xr = 5
    v_wr = 13
    v_kvl = 15
    v_kr = 19
    v_vr = 20
    v_m, v_l, v_ls = 21, 22, 23
    v_t = 24
    V_Q = 32
    V_ACC = 64
    V_F = 128
    V_S = 128
    V_FR = 144

    KVMOD = 'nt' if '--nt' in sys.argv else ''
    if '--norot' in sys.argv:
        ROTCODE = f's_mov_b32 s{s_kvst}, 0'
    else:
        ROTCODE = f'''s_lshr_b32 s{s_kvst}, s2, 4
    s_xor_b32 s{s_kvst}, s{s_kvst}, s2'''
    nst = [0]
    def stamp():
        if not STAMP:
            return
        i = nst[0]; nst[0] += 1
        assert i < 10
        a(f's_memrealtime s[{76+2*i}:{77+2*i}]')
        a('s_waitcnt lgkmcnt(0)')
    def stamp_flush(a_srd, s_tmp0, s_tmp1, kidx, nw):
        if not STAMP:
            return
        a(f'''
        s_mul_i32 s{s_tmp0}, s2, {nw}
        s_add_u32 s{s_tmp0}, s{s_tmp0}, s{s_wv}
        s_lshl_b32 s{s_tmp0}, s{s_tmp0}, 7
        s_add_u32 s{s_tmp0}, s{s_tmp0}, {WS_STAMP + kidx*(1<<20)}
        v_mov_b32 v2, 0
        ''')
        for i in range(nst[0]):
            a(f'''
            v_mov_b32 v4, s{76+2*i}
            v_mov_b32 v5, s{77+2*i}
            ''')
            a(f'buffer_store_dwordx2 v[4:5], v2, {sr(a_srd,4)}, s{s_tmp0} offen offset:{8*i}')
            a('s_nop 1')
    XOFF = [0, 57344]
    WOFF = [24576, 57344 + 24576]

    a.label(NAME + '_kernel')
    a(f'''
    s_cmp_ge_u32 s2, 256
    s_cbranch_scc1 K1_END
    s_load_dwordx16 s[48:63], s[0:1], 0
    s_load_dwordx8 s[64:71], s[0:1], 64
    s_load_dwordx2 s[72:73], s[0:1], 96
    v_and_b32 v{v_lane}, 63, v0
    v_lshrrev_b32 v{v_t}, 6, v0
    v_readfirstlane_b32 s{s_wv}, v{v_t}
    s_and_b32 s{s_t0}, s2, 7
    s_lshr_b32 s{s_t1}, s2, 3
    s_lshr_b32 s{s_blk}, s{s_t0}, 2
    s_and_b32 s{s_t0}, s{s_t0}, 3
    s_and_b32 s{s_b}, s{s_t1}, 7
    s_lshr_b32 s{s_t1}, s{s_t1}, 3
    s_lshl_b32 s{s_t0}, s{s_t0}, 2
    s_add_u32 s{s_hp}, s{s_t0}, s{s_t1}
    s_cmp_ge_u32 s{s_wv}, 6
    s_cselect_b32 s{s_hh}, 1, 0
    s_mul_i32 s{s_t0}, s{s_hh}, 6
    s_sub_u32 s{s_qt}, s{s_wv}, s{s_t0}
    s_mov_b32 s{s_c}, 0x3e0293ee
    s_waitcnt lgkmcnt(0)
    ''')
    stamp()
    a(f'''
    s_cmp_eq_u32 s{s_blk}, 0
    ''')
    for i in range(10):
        a(f's_cselect_b32 s{48+i}, s{48+i}, s{58+i}')
    a(f'''
    s_mul_i32 s{s_t0}, s{s_b}, 245760
    s_add_u32 s{S_X}, s48, s{s_t0}
    s_addc_u32 s{S_X+1}, s49, 0
    s_mov_b32 s{S_X+2}, 245760
    s_mov_b32 s{S_X+3}, 0x00020000
    s_lshl_b32 s{s_t0}, s{s_hp}, 9
    s_add_u32 s{S_WQ}, s54, s{s_t0}
    s_addc_u32 s{S_WQ+1}, s55, 0
    s_sub_u32 s{S_WQ+2}, 5242880, s{s_t0}
    s_mov_b32 s{S_WQ+3}, 0x00020000
    s_mov_b32 s{S_WO}, s56
    s_mov_b32 s{S_WO+1}, s57
    s_mov_b32 s{S_WO+2}, 5242880
    s_mov_b32 s{S_WO+3}, 0x00020000
    s_mov_b32 s{S_WS}, s72
    s_mov_b32 s{S_WS+1}, s73
    s_mov_b32 s{S_WS+2}, 0x10000000
    s_mov_b32 s{S_WS+3}, 0x00020000
    ''')
    a(f'''
    s_lshl_b32 s{s_t0}, s{s_b}, 5
    s_lshl_b32 s{s_t1}, s{s_hp}, 1
    s_add_u32 s{s_t0}, s{s_t0}, s{s_t1}
    s_lshl_b32 s{s_t0}, s{s_t0}, 17
    s_cmp_lt_u32 s{s_wv}, 4
    s_cselect_b32 s{s_t1}, s50, s52
    s_cselect_b32 s{s_t2}, s51, s53
    s_add_u32 s{S_KV}, s{s_t1}, s{s_t0}
    s_addc_u32 s{S_KV+1}, s{s_t2}, 0
    s_mov_b32 s{S_KV+2}, 262144
    s_mov_b32 s{S_KV+3}, 0x00020000
    s_cmp_lt_u32 s{s_wv}, 8
    s_cselect_b32 s{s_ldr}, 1, 0
    ''')
    L = v_lane
    t = v_t
    a(f'''
    v_lshrrev_b32 v{t}, 4, v{L}
    v_bfe_u32 v{t+1}, v{L}, 2, 2
    v_and_b32 v{t+2}, 3, v{L}
    v_lshlrev_b32 v{t+3}, 6, v{t}
    v_lshl_add_u32 v{t+3}, v{t+2}, 4, v{t+3}
    v_lshl_add_u32 v{v_wql}, v{t+1}, 13, v{t+3}
    v_lshl_add_u32 v{t+4}, v{t+1}, 8, v{t+3}
    ''')
    a(f'''
    v_and_b32 v{t+5}, 15, v{L}
    v_xor_b32 v{t+5}, v{t+5}, v{t}
    v_lshlrev_b32 v{t+5}, 4, v{t+5}
    v_lshl_add_u32 v{t+5}, v{t}, 8, v{t+5}
    s_cmp_lt_u32 s{s_wv}, 4
    s_cselect_b64 vcc, -1, 0
    ''')
    for i in range(4):
        a(f'''
        v_xor_b32 v{t+6}, {64*i}, v{t+5}
        v_cndmask_b32 v{v_kvl+i}, v{t+4}, v{t+6}, vcc
        ''')
    a(f'''
    v_lshrrev_b32 v{t+1}, 3, v{L}
    v_mul_u32_u24 v{t+1}, 1280, v{t+1}
    v_and_b32 v{t+2}, 7, v{L}
    v_xor_b32 v{t+2}, v{t+2}, v{t}
    v_lshl_add_u32 v{t+1}, v{t+2}, 4, v{t+1}
    s_and_b32 s{s_t0}, s{s_wv}, 1
    s_lshl_b32 s{s_t0}, s{s_t0}, 6
    v_xor_b32 v{v_xla}, s{s_t0}, v{t+1}
    v_xor_b32 v{v_xlb}, 64, v{v_xla}
    ''')
    a(f'''
    v_and_b32 v{t+1}, 31, v{L}
    v_lshrrev_b32 v{t+2}, 5, v{L}
    v_bfe_u32 v{t+3}, v{L}, 1, 3
    v_xor_b32 v{t+3}, v{t+3}, v{t+2}
    v_lshlrev_b32 v{t+3}, 4, v{t+3}
    v_lshl_add_u32 v{t+3}, v{t+1}, 7, v{t+3}
    s_lshl_b32 s{s_t0}, s{s_qt}, 12
    v_add_u32 v{t+3}, s{s_t0}, v{t+3}
    ''')
    for ks in range(4):
        a(f'v_xor_b32 v{v_xr+ks}, {32*ks}, v{t+3}')
        a(f'v_add_u32 v{v_xr+4+ks}, {XOFF[1]}, v{v_xr+ks}')
    a(f'''
    v_bfe_u32 v{t+3}, v{L}, 2, 2
    v_lshlrev_b32 v{t+3}, 6, v{t+3}
    v_lshl_add_u32 v{t+3}, v{t+2}, 12, v{t+3}
    v_bfe_u32 v{t+4}, v{L}, 4, 1
    v_lshl_add_u32 v{t+3}, v{t+4}, 5, v{t+3}
    v_and_b32 v{t+4}, 1, v{L}
    v_lshl_add_u32 v{t+5}, v{t+4}, 4, v{t+3}
    v_bfe_u32 v{t+4}, v{L}, 1, 1
    v_lshl_add_u32 v{t+5}, v{t+4}, 3, v{t+5}
    s_lshl_b32 s{s_t0}, s{s_hh}, 10
    s_add_u32 s{s_t0}, s{s_t0}, {WOFF[0]}
    v_add_u32 v{v_wr}, s{s_t0}, v{t+5}
    v_add_u32 v{v_wr+1}, {WOFF[1]-WOFF[0]}, v{v_wr}
    ''')
    a(f'''
    v_bfe_u32 v{t+4}, v{L}, 2, 2
    v_lshlrev_b32 v{t+4}, 6, v{t+4}
    v_lshl_add_u32 v{t+4}, v{t+2}, 10, v{t+4}
    v_bfe_u32 v{t+5}, v{L}, 4, 1
    v_lshl_add_u32 v{t+4}, v{t+5}, 5, v{t+4}
    v_and_b32 v{t+5}, 3, v{L}
    v_lshl_add_u32 v{t+4}, v{t+5}, 3, v{t+4}
    s_lshl_b32 s{s_t0}, s{s_hh}, 13
    s_add_u32 s{s_t1}, s{s_t0}, 16384
    v_add_u32 v{v_vr}, s{s_t1}, v{t+4}
    ''')
    a(f'''
    v_and_b32 v{t+4}, 15, v{L}
    v_xor_b32 v{t+4}, v{t+4}, v{t+2}
    v_lshlrev_b32 v{t+4}, 4, v{t+4}
    v_lshl_add_u32 v{t+4}, v{t+1}, 8, v{t+4}
    v_add_u32 v{v_kr}, s{s_t0}, v{t+4}
    ''')

    a(f'''
    s_cmp_ge_u32 s{s_wv}, 10
    s_cbranch_scc1 K1_NOPREP
    v_and_b32 v{t+3}, 15, v{L}
    v_lshlrev_b32 v{t+3}, 1, v{t+3}
    v_bfe_u32 v{t+4}, v{L}, 4, 1
    v_mul_u32_u24 v{t+4}, {16*1280}, v{t+4}
    v_add_u32 v{t+3}, v{t+3}, v{t+4}
    v_mul_u32_u24 v{t+4}, {4*1280}, v{t+2}
    v_add_u32 v{t+3}, v{t+3}, v{t+4}
    s_mul_i32 s{s_t0}, s{s_hp}, {256*1280}
    s_mul_i32 s{s_t1}, s{s_b}, 160
    s_add_u32 s{s_t0}, s{s_t0}, s{s_t1}
    ''')
    for f in range(4):
        a(f'''
        s_lshl_b32 s{s_t1}, s{s_wv}, 2
        s_add_u32 s{s_t1}, s{s_t1}, {f}
        s_mul_i32 s{s_t2}, s{s_t1}, 52
        s_lshr_b32 s{s_t2}, s{s_t2}, 8
        s_mul_i32 s{s_t3}, s{s_t2}, 5
        s_sub_u32 s{s_t3}, s{s_t1}, s{s_t3}
        s_mul_i32 s{s_t2}, s{s_t2}, {32*1280}
        s_lshl_b32 s{s_t3}, s{s_t3}, 5
        s_add_u32 s{s_t2}, s{s_t2}, s{s_t3}
        s_add_u32 s{s_t2}, s{s_t2}, s{s_t0}
        s_add_u32 s{s_t3}, s{s_t2}, {8*1280}
        ''')
        for j in range(8):
            so = s_t2 if j < 4 else s_t3
            a(f'buffer_load_ushort v{V_Q+8*f+j}, v{t+3}, {sr(S_WO,4)}, s{so} offen offset:{(j%4)*1280}')
    a.label('K1_NOPREP')

    def q_loads(slot):
        for k in range(4):
            a(f'''
            s_lshl_b32 s{s_t0}, s{s_wv}, 12
            s_add_u32 m0, s{s_t0}, {WOFF[slot] + 1024*k}
            s_add_u32 s{s_t1}, s{s_wqoff}, {(k//2)*4*8192 + (k%2)*256}
            buffer_load_dwordx4 v{v_wql}, {sr(S_WQ,4)}, s{s_t1} offen lds
            ''')
        for k in range(3):
            a(f'''
            s_mul_i32 s{s_t0}, s{s_wv}, 3072
            s_add_u32 m0, s{s_t0}, {XOFF[slot] + 1024*k}
            s_add_u32 s{s_t1}, s{s_xoff}, {k*8*1280}
            buffer_load_dwordx4 v{v_xla if k != 1 else v_xlb}, {sr(S_X,4)}, s{s_t1} offen lds
            ''')
        a(f'''
        s_add_u32 s{s_wqoff}, s{s_wqoff}, {64*8192}
        s_add_u32 s{s_xoff}, s{s_xoff}, 128
        ''')

    def kv_loads():
        a(f'''
        s_and_b32 s{s_t2}, s{s_kvst}, 15
        s_lshl_b32 s{s_t2}, s{s_t2}, 13
        s_add_u32 s{s_t2}, s{s_t2}, s{s_kvoff}
        s_add_u32 s{s_kvst}, s{s_kvst}, 1
        ''')
        for k in range(4):
            a(f'''
            s_add_u32 s{s_t0}, s{s_lslot}, s{s_kvlds}
            s_add_u32 m0, s{s_t0}, {1024*k}
            s_add_u32 s{s_t1}, s{s_t2}, {1024*k}
            buffer_load_dwordx4 v{v_kvl+k}, {sr(S_KV,4)}, s{s_t1} offen {KVMOD} lds
            ''')

    a(f'''
    s_lshl_b32 s{s_wqoff}, s{s_wv}, 16
    s_mul_i32 s{s_xoff}, s{s_wv}, {24*1280}
    s_bfe_u32 s{s_t0}, s{s_wv}, 0x10001
    s_and_b32 s{s_t1}, s{s_wv}, 1
    s_lshl_b32 s{s_kvoff}, s{s_t0}, 17
    s_lshl_b32 s{s_t2}, s{s_t1}, 12
    s_add_u32 s{s_kvoff}, s{s_kvoff}, s{s_t2}
    s_lshr_b32 s{s_t3}, s{s_wv}, 2
    s_lshl_b32 s{s_kvlds}, s{s_t3}, 14
    s_lshl_b32 s{s_t0}, s{s_t0}, 13
    s_add_u32 s{s_kvlds}, s{s_kvlds}, s{s_t0}
    s_add_u32 s{s_kvlds}, s{s_kvlds}, s{s_t2}
    s_mov_b32 s{s_lslot}, {4*32768}
    {ROTCODE}
    s_cmp_eq_u32 s{s_ldr}, 0
    s_cbranch_scc1 K1_NOLD0
    ''')
    q_loads(0)
    kv_loads()
    a.label('K1_NOLD0')
    for i in range(64):
        a(f'v_mov_b32 v{V_ACC+i}, 0')

    AF = [V_F, V_F + 20]

    def q_reads(slot, ks, st):
        base = AF[st]
        a(f'ds_read_b128 {vr(base+16,4)}, v{v_xr+4*slot+ks}')
        for T in range(4):
            for n in range(2):
                a(f'ds_read_b64_tr_b16 {vr(base+4*T+2*n,2)}, v{v_wr+slot} offset:{(4*ks+n)*2048+T*256}')

    def q_mfma(st):
        base = AF[st]
        for T in range(4):
            a(f'v_mfma_f32_32x32x16_bf16 {vr(V_ACC+16*T,16)}, {vr(base+4*T,4)}, {vr(base+16,4)}, {vr(V_ACC+16*T,16)}')

    stamp()
    a(f's_mov_b32 s{s_cnt}, 0')
    a.label('K1_QLOOP')
    for slot in range(2):
        if slot == 0:
            a(f'''
            s_cmp_eq_u32 s{s_cnt}, 0
            s_cbranch_scc0 K1_QW1
            s_waitcnt vmcnt(4)
            s_branch K1_QW2
            ''')
            a.label('K1_QW1')
            a('s_waitcnt vmcnt(0)')
            a.label('K1_QW2')
        else:
            a('s_waitcnt vmcnt(0)')
        a('s_barrier')
        lab = f'K1_QNL{slot}'
        a(f's_cmp_eq_u32 s{s_ldr}, 0')
        a(f's_cbranch_scc1 {lab}')
        if slot == 1:
            a(f's_cmp_eq_u32 s{s_cnt}, 4')
            a(f's_cbranch_scc1 {lab}')
        q_loads(1 - slot)
        a.label(lab)
        q_reads(slot, 0, 0)
        q_reads(slot, 1, 1)
        a('s_waitcnt lgkmcnt(9)')
        q_mfma(0)
        q_reads(slot, 2, 0)
        a('s_waitcnt lgkmcnt(9)')
        q_mfma(1)
        q_reads(slot, 3, 1)
        a('s_waitcnt lgkmcnt(9)')
        q_mfma(0)
        a('s_waitcnt lgkmcnt(0)')
        q_mfma(1)
    a(f'''
    s_add_u32 s{s_cnt}, s{s_cnt}, 1
    s_cmp_lt_u32 s{s_cnt}, 5
    s_cbranch_scc1 K1_QLOOP
    ''')

    stamp()
    a(f'''
    s_cmp_ge_u32 s{s_wv}, 10
    s_cbranch_scc1 K1_NOPREP2
    s_waitcnt vmcnt(0)
    v_lshlrev_b32 v{t}, 4, v{L}
    s_mul_i32 s{s_t0}, s{s_blk}, 40
    s_mul_i32 s{s_t1}, s{s_b}, 5
    s_add_u32 s{s_t0}, s{s_t0}, s{s_t1}
    ''')
    for f in range(4):
        a(f'''
        s_lshl_b32 s{s_t1}, s{s_wv}, 2
        s_add_u32 s{s_t1}, s{s_t1}, {f}
        s_mul_i32 s{s_t2}, s{s_t1}, 52
        s_lshr_b32 s{s_t2}, s{s_t2}, 8
        s_mul_i32 s{s_t3}, s{s_t2}, 5
        s_sub_u32 s{s_t3}, s{s_t1}, s{s_t3}
        s_add_u32 s{s_t3}, s{s_t3}, s{s_t0}
        s_lshl_b32 s{s_t3}, s{s_t3}, 7
        s_add_u32 s{s_t3}, s{s_t3}, s{s_t2}
        s_lshl_b32 s{s_t2}, s{s_hp}, 3
        s_add_u32 s{s_t3}, s{s_t3}, s{s_t2}
        s_lshl_b32 s{s_t3}, s{s_t3}, 10
        s_add_u32 s{s_t3}, s{s_t3}, {WS_WO}
        ''')
        for jj in range(4):
            a(f'v_lshl_or_b32 v{V_Q+8*f+jj}, v{V_Q+8*f+2*jj+1}, 16, v{V_Q+8*f+2*jj}')
        a(f'buffer_store_dwordx4 {vr(V_Q+8*f,4)}, v{t}, {sr(S_WS,4)}, s{s_t3} offen')
    a.label('K1_NOPREP2')

    a('s_barrier')
    a(f's_cmp_eq_u32 s{s_ldr}, 0')
    a('s_cbranch_scc1 K1_NOLD1')
    for j in range(1, 4):
        a(f's_mov_b32 s{s_lslot}, {(j-1)*32768}')
        kv_loads()
    a.label('K1_NOLD1')

    for T in range(4):
        for u in range(2):
            for i in range(4):
                a(f'v_cvt_pk_bf16_f32 v{V_Q+8*T+4*u+i}, v{V_ACC+16*T+8*u+2*i}, v{V_ACC+16*T+8*u+2*i+1}')
    if DEBUG_Q:
        a(f'''
        v_lshlrev_b32 v{t}, 4, v{L}
        s_mul_i32 s{s_t0}, s2, 12
        s_add_u32 s{s_t0}, s{s_t0}, s{s_wv}
        s_lshl_b32 s{s_t0}, s{s_t0}, 13
        s_add_u32 s{s_t0}, s{s_t0}, {WS_DBG}
        ''')
        for k in range(8):
            a(f'''
            s_add_u32 s{s_t1}, s{s_t0}, {1024*k}
            buffer_store_dwordx4 {vr(V_Q+4*k,4)}, v{t}, {sr(S_WS,4)}, s{s_t1} offen
            ''')
    for i in range(64):
        a(f'v_mov_b32 v{V_ACC+i}, 0')
    a(f'''
    v_mov_b32 v{v_m}, 0xff800000
    v_mov_b32 v{v_l}, 0
    s_mov_b32 s{s_slot}, {4*32768}
    s_mov_b32 s{s_lslot}, {3*32768}
    s_mov_b32 s{s_cnt}, 0
    ''')

    stamp()
    FR = [V_FR + 4 * i for i in range(6)]
    v_ka = v_t
    v_kb = v_t + 1
    v_va = v_t + 3
    v_x = v_t + 4

    def qk():
        a(f'v_add_u32 v{v_ka}, s{s_slot}, v{v_kr}')
        def rd(ks):
            r = v_kb + (ks % 2)
            if ks == 0:
                a(f'ds_read_b128 {vr(FR[ks%6],4)}, v{v_ka}')
            else:
                a(f'v_xor_b32 v{r}, {32*ks}, v{v_ka}')
                a(f'ds_read_b128 {vr(FR[ks%6],4)}, v{r}')
        for ks in range(6):
            rd(ks)
        for ks in range(8):
            issued = min(8, 6 + ks)
            a(f's_waitcnt lgkmcnt({issued - 1 - ks})')
            c = '0' if ks == 0 else vr(V_S, 16)
            a(f'v_mfma_f32_32x32x16_bf16 {vr(V_S,16)}, {vr(FR[ks%6],4)}, {vr(V_Q+4*ks,4)}, {c}')
            if ks + 6 < 8:
                rd(ks + 6)

    def expsum():
        for i in range(16):
            a(f'v_fma_f32 v{V_S+i}, v{V_S+i}, s{s_c}, -v{v_m}')
        for i in range(16):
            a(f'v_exp_f32 v{V_S+i}, v{V_S+i}')
        a(f'v_add_f32 v{v_ls}, v{V_S}, v{V_S+1}')
        a(f'v_add_f32 v{v_x}, v{V_S+2}, v{V_S+3}')
        for i in range(4, 16, 2):
            a(f'v_add_f32 v{v_ls}, v{v_ls}, v{V_S+i}')
            a(f'v_add_f32 v{v_x}, v{v_x}, v{V_S+i+1}')
        a(f'v_add_f32 v{v_ls}, v{v_ls}, v{v_x}')

    def v_reads(idx):
        u, T = idx // 4, idx % 4
        for n in range(2):
            a(f'ds_read_b64_tr_b16 {vr(FR[idx%6]+2*n,2)}, v{v_va} offset:{(4*u+2*n)*1024+T*256}')

    a.label('K1_ALOOP')
    a(f'''
    s_cmp_ge_u32 s{s_cnt}, 13
    s_cbranch_scc1 K1_AW1
    s_waitcnt vmcnt(12)
    s_branch K1_AW2
    ''')
    a.label('K1_AW1')
    a('s_waitcnt vmcnt(0)')
    a.label('K1_AW2')
    a('s_barrier')
    a(f'''
    s_cmp_eq_u32 s{s_ldr}, 0
    s_cbranch_scc1 K1_ANL
    s_cmp_ge_u32 s{s_cnt}, 12
    s_cbranch_scc1 K1_ANL
    ''')
    kv_loads()
    a.label('K1_ANL')
    a(f'''
    s_add_u32 s{s_lslot}, s{s_lslot}, 32768
    s_cmp_eq_u32 s{s_lslot}, {5*32768}
    s_cselect_b32 s{s_lslot}, 0, s{s_lslot}
    ''')
    qk()
    a(f'v_add_u32 v{v_va}, s{s_slot}, v{v_vr}')
    for idx in range(6):
        v_reads(idx)
    expsum()
    a(f'''
    v_cmp_nge_f32 vcc, 0x49800000, v{v_ls}
    s_cbranch_vccnz K1_SLOW
    ''')
    a.label('K1_ACONT')
    a(f'v_add_f32 v{v_l}, v{v_l}, v{v_ls}')
    for u in range(2):
        for i in range(4):
            a(f'v_cvt_pk_bf16_f32 v{V_S+8*u+i}, v{V_S+8*u+2*i}, v{V_S+8*u+2*i+1}')
    for idx in range(8):
        u, T = idx // 4, idx % 4
        issued = min(8, 6 + idx)
        a(f's_waitcnt lgkmcnt({2*(issued - 1 - idx)})')
        a(f'v_mfma_f32_32x32x16_bf16 {vr(V_ACC+16*T,16)}, {vr(FR[idx%6],4)}, {vr(V_S+8*u,4)}, {vr(V_ACC+16*T,16)}')
        if idx + 6 < 8:
            v_reads(idx + 6)
    a(f'''
    s_add_u32 s{s_slot}, s{s_slot}, 32768
    s_cmp_eq_u32 s{s_slot}, {5*32768}
    s_cselect_b32 s{s_slot}, 0, s{s_slot}
    s_add_u32 s{s_cnt}, s{s_cnt}, 1
    s_cmp_lt_u32 s{s_cnt}, 16
    s_cbranch_scc1 K1_ALOOP
    s_branch K1_EPI
    ''')
    a.label('K1_SLOW')
    a('s_waitcnt lgkmcnt(0)')
    qk()
    a(f'v_max3_f32 v{v_x}, v{V_S}, v{V_S+1}, v{V_S+2}')
    for i in range(3, 15, 2):
        a(f'v_max3_f32 v{v_x}, v{v_x}, v{V_S+i}, v{V_S+i+1}')
    a(f'''
    v_max_f32 v{v_x}, v{v_x}, v{V_S+15}
    v_mov_b32 v{v_x+1}, v{v_x}
    v_permlane32_swap_b32 v{v_x}, v{v_x+1}
    v_max_f32 v{v_x}, v{v_x}, v{v_x+1}
    v_mul_f32 v{v_x}, s{s_c}, v{v_x}
    v_max_f32 v{v_x}, v{v_x}, v{v_m}
    v_sub_f32 v{v_x+1}, v{v_m}, v{v_x}
    v_exp_f32 v{v_x+1}, v{v_x+1}
    v_mov_b32 v{v_m}, v{v_x}
    v_mul_f32 v{v_l}, v{v_l}, v{v_x+1}
    ''')
    for i in range(64):
        a(f'v_mul_f32 v{V_ACC+i}, v{V_ACC+i}, v{v_x+1}')
    for idx in range(6):
        v_reads(idx)
    expsum()
    a('s_branch K1_ACONT')

    a.label('K1_EPI')
    stamp()
    a(f'''
    v_mov_b32 v{v_x}, v{v_l}
    v_permlane32_swap_b32 v{v_l}, v{v_x}
    v_add_f32 v{v_l}, v{v_l}, v{v_x}
    v_rcp_f32 v{v_l}, v{v_l}
    ''')
    a(f'''
    v_bfe_u32 v{v_x}, v{L}, 4, 1
    v_lshlrev_b32 v{v_x}, 17, v{v_x}
    v_and_b32 v{v_x+1}, 15, v{L}
    v_lshl_add_u32 v{v_x}, v{v_x+1}, 4, v{v_x}
    v_lshrrev_b32 v{v_x+1}, 5, v{L}
    v_lshl_add_u32 v{v_x}, v{v_x+1}, 9, v{v_x}
    s_mul_i32 s{s_t0}, s{s_blk}, 96
    s_mul_i32 s{s_t1}, s{s_b}, 12
    s_add_u32 s{s_t0}, s{s_t0}, s{s_t1}
    s_lshl_b32 s{s_t1}, s{s_qt}, 1
    s_add_u32 s{s_t0}, s{s_t0}, s{s_t1}
    s_lshl_b32 s{s_t0}, s{s_t0}, 7
    s_lshl_b32 s{s_t1}, s{s_hp}, 3
    s_add_u32 s{s_t0}, s{s_t0}, s{s_t1}
    s_lshl_b32 s{s_t1}, s{s_hh}, 2
    s_add_u32 s{s_t0}, s{s_t0}, s{s_t1}
    s_lshl_b32 s{s_t0}, s{s_t0}, 10
    ''')
    for T in range(4):
        for i in range(16):
            a(f'v_mul_f32 v{V_ACC+16*T+i}, v{V_ACC+16*T+i}, v{v_l}')
        for u in range(2):
            for i in range(4):
                a(f'v_cvt_pk_bf16_f32 v{V_Q+8*T+4*u+i}, v{V_ACC+16*T+8*u+2*i}, v{V_ACC+16*T+8*u+2*i+1}')
            a(f'buffer_store_dwordx4 {vr(V_Q+8*T+4*u,4)}, v{v_x}, {sr(S_WS,4)}, s{s_t0} offen offset:{T*1024+u*256}')
    if STAMP:
        a('s_waitcnt vmcnt(0)')
    stamp()
    stamp_flush(S_WS, s_t0, s_t1, 0, 12)
    a.label('K1_END')
    a('s_endpgm')
    return a.finalize()


def kernel2():
    a = Asm()
    S_WS, S_OUT = 8, 12
    s_wv, s_blk, s_mt, s_nt = 16, 17, 18, 19
    s_t0, s_t1, s_t2 = 20, 21, 22
    s_cnt = 23
    s_off = 24
    D = 5
    v_l16 = 1
    V_ST = 8
    a.label('outproj_kernel')
    a(f'''
    s_cmp_ge_u32 s2, 256
    s_cbranch_scc1 K2_END
    s_load_dwordx2 s[4:5], s[0:1], 80
    s_load_dwordx2 s[6:7], s[0:1], 96
    v_and_b32 v2, 63, v0
    v_lshrrev_b32 v3, 6, v0
    v_readfirstlane_b32 s{s_wv}, v3
    v_lshlrev_b32 v{v_l16}, 4, v2
    s_and_b32 s{s_t0}, s2, 7
    s_lshr_b32 s{s_t1}, s2, 3
    s_lshr_b32 s{s_blk}, s{s_t0}, 2
    s_and_b32 s{s_t0}, s{s_t0}, 3
    s_lshl_b32 s{s_t0}, s{s_t0}, 2
    s_and_b32 s{s_t2}, s{s_t1}, 3
    s_add_u32 s{s_mt}, s{s_t0}, s{s_t2}
    s_lshr_b32 s{s_nt}, s{s_t1}, 2
    s_waitcnt lgkmcnt(0)
    s_mov_b32 s{S_WS}, s6
    s_mov_b32 s{S_WS+1}, s7
    s_mov_b32 s{S_WS+2}, 0x10000000
    s_mov_b32 s{S_WS+3}, 0x00020000
    s_mov_b32 s{S_OUT}, s4
    s_mov_b32 s{S_OUT+1}, s5
    s_mov_b32 s{S_OUT+2}, {8*192*1280*2}
    s_mov_b32 s{S_OUT+3}, 0x00020000
    ''')
    a(f'''
    s_mul_i32 s{s_t0}, s{s_blk}, 40
    s_mul_i32 s{s_t1}, s{s_nt}, 5
    s_add_u32 s{s_t0}, s{s_t0}, s{s_t1}
    s_lshl_b32 s{s_t0}, s{s_t0}, 17
    s_lshl_b32 s{s_t2}, s{s_wv}, 15
    s_add_u32 s{s_t0}, s{s_t0}, s{s_t2}
    s_add_u32 s{s_t0}, s{s_t0}, {WS_WO}
    ''')
    for i in range(5):
        a(f's_add_u32 s{s_off+i}, s{s_t0}, {i << 17}')
    a(f'''
    s_mul_i32 s{s_t0}, s{s_blk}, 96
    s_mul_i32 s{s_t1}, s{s_mt}, 6
    s_add_u32 s{s_t0}, s{s_t0}, s{s_t1}
    s_lshl_b32 s{s_t0}, s{s_t0}, 17
    s_add_u32 s{s_t0}, s{s_t0}, s{s_t2}
    ''')
    for i in range(6):
        a(f's_add_u32 s{s_off+5+i}, s{s_t0}, {i << 17}')
    for i in range(120):
        a(f'v_accvgpr_write_b32 a{i}, 0')

    def loads(st, imm):
        for i in range(11):
            a(f'buffer_load_dwordx4 {vr(V_ST+44*st+4*i,4)}, v{v_l16}, {sr(S_WS,4)}, s{s_off+i} offen offset:{imm}')

    def mfmas(st):
        b = V_ST + 44 * st
        for q in range(6):
            for n in range(5):
                acc = 4 * (q * 5 + n)
                a(f'v_mfma_f32_16x16x32_bf16 {ar(acc,4)}, {vr(b+4*n,4)}, {vr(b+20+4*q,4)}, {ar(acc,4)}')

    issued = 0

    def issue(k):
        if k % 4 == 0 and k > 0:
            for i in range(11):
                a(f's_add_u32 s{s_off+i}, s{s_off+i}, 4096')
        loads(k % D, (k % 4) * 1024)

    for k in range(D - 1):
        issue(k)
    for k in range(32):
        if k + D - 1 < 32:
            issue(k + D - 1)
            a(f's_waitcnt vmcnt({11*(D-1)})')
        else:
            a(f's_waitcnt vmcnt({11*(31-k)})')
        mfmas(k % D)
    a(f'''
    s_mul_i32 s{s_t0}, s{s_wv}, 30720
    v_add_u32 v3, s{s_t0}, v{v_l16}
    s_nop 7
    ''')
    for tl in range(30):
        a(f'ds_write_b128 v3, {ar(4*tl,4)} offset:{tl*1024}')
    a('s_waitcnt lgkmcnt(0)')
    a('s_barrier')
    a(f'''
    v_and_b32 v4, 15, v2
    v_mul_u32_u24 v4, 2560, v4
    v_lshrrev_b32 v5, 4, v2
    v_lshl_add_u32 v4, v5, 3, v4
    s_mul_i32 s{s_t0}, s{s_mt}, {96*2560}
    s_mul_i32 s{s_t1}, s{s_blk}, 1280
    s_add_u32 s{s_t0}, s{s_t0}, s{s_t1}
    s_mul_i32 s{s_t1}, s{s_nt}, 160
    s_add_u32 s{s_t0}, s{s_t0}, s{s_t1}
    s_lshl_b32 s{s_t2}, s{s_wv}, 10
    v_add_u32 v3, s{s_t2}, v{v_l16}
    ''')
    for i in range(8):
        skip = None
        if i == 7:
            a(f's_cmp_ge_u32 s{s_wv}, 2')
            a('s_cbranch_scc1 K2_END')
        for w in range(4):
            off = w * 30720 + i * 4096
            if off < 65536:
                a(f'ds_read_b128 {vr(16+4*w,4)}, v3 offset:{off}')
            else:
                a(f'v_add_u32 v6, {off}, v3')
                a(f'ds_read_b128 {vr(16+4*w,4)}, v6')
        a(f'''
        s_add_u32 s{s_t1}, s{s_wv}, {4*i}
        s_mul_i32 s{s_t2}, s{s_t1}, 52
        s_lshr_b32 s{s_t2}, s{s_t2}, 8
        s_mul_i32 s30, s{s_t2}, 5
        s_sub_u32 s30, s{s_t1}, s30
        s_mul_i32 s{s_t2}, s{s_t2}, {16*2560}
        s_lshl_b32 s30, s30, 5
        s_add_u32 s{s_t2}, s{s_t2}, s30
        s_add_u32 s{s_t2}, s{s_t2}, s{s_t0}
        s_waitcnt lgkmcnt(0)
        v_pk_add_f32 v[16:17], v[16:17], v[20:21]
        v_pk_add_f32 v[18:19], v[18:19], v[22:23]
        v_pk_add_f32 v[24:25], v[24:25], v[28:29]
        v_pk_add_f32 v[26:27], v[26:27], v[30:31]
        v_pk_add_f32 v[16:17], v[16:17], v[24:25]
        v_pk_add_f32 v[18:19], v[18:19], v[26:27]
        v_cvt_pk_bf16_f32 v32, v16, v17
        v_cvt_pk_bf16_f32 v33, v18, v19
        buffer_store_dwordx2 v[32:33], v4, {sr(S_OUT,4)}, s{s_t2} offen
        ''')
    a.label('K2_END')
    a('s_endpgm')
    return a.finalize()


HEADER = f'''; Kernarg layout: d_in[0..9], d_out, d_debug, d_ws (see the .ref file)
; @launch kernel={NAME}_kernel grid=(256,1,1) block=(768,1,1) lds=163840
; @launch kernel=outproj_kernel grid=(256,1,1) block=(256,1,1) lds=122880
.amdgcn_target "amdgcn-amd-amdhsa--gfx950"
.text
'''


def kd(name, vgpr, sgpr, accum):
    return f'''
.section .rodata,"a"
.p2align 6
.amdhsa_kernel {name}
  .amdhsa_next_free_vgpr {vgpr}
  .amdhsa_next_free_sgpr {sgpr}
  .amdhsa_accum_offset {accum}
  .amdhsa_group_segment_fixed_size 0
  .amdhsa_kernarg_size 104
  .amdhsa_user_sgpr_count 2
  .amdhsa_user_sgpr_kernarg_segment_ptr 1
  .amdhsa_system_sgpr_workgroup_id_x 1
.end_amdhsa_kernel
'''


def main():
    out = HEADER
    for nm, fn in ((NAME + '_kernel', kernel1), ('outproj_kernel', kernel2)):
        out += f'.globl {nm}\n.p2align 8\n.type {nm},@function\n'
        out += fn()
    out += kd(NAME + '_kernel', 168, 100, 168)
    out += kd('outproj_kernel', 256 + 120, 96, 256)
    path = [x for x in sys.argv[1:] if not x.startswith('--')]
    path = path[0] if path else f'cdna_kernels/{NAME}.s'
    open(path, 'w').write(out)
    print('wrote', path, len(out), 'bytes')


main()
```

```python
import sys, re
NAME = 'concat_heads__gqa_block_cached__mha_block_cached__near_ridge'
base = open('v4.s').read()
lines = base.split('\n')
li = [i for i, l in enumerate(lines) if l.startswith('; @launch')]
def kd(name, v=64):
    return f'''
.section .rodata,"a"
.p2align 6
.amdhsa_kernel {name}
  .amdhsa_next_free_vgpr {v}
  .amdhsa_next_free_sgpr 96
  .amdhsa_accum_offset {v}
  .amdhsa_group_segment_fixed_size 0
  .amdhsa_kernarg_size 104
  .amdhsa_user_sgpr_count 2
  .amdhsa_user_sgpr_kernarg_segment_ptr 1
  .amdhsa_system_sgpr_workgroup_id_x 1
.end_amdhsa_kernel
'''
def add(pre_launch, code, kname, out):
    L = list(lines)
    L.insert(li[0], pre_launch)
    s = '\n'.join(L)
    k = s.index('\n.section .rodata')
    s = s[:k] + f'\n.globl {kname}\n.p2align 8\n.type {kname},@function\n' + code + s[k:] + kd(kname)
    open(out, 'w').write(s)

spin = '''spin_kernel:
  s_mov_b32 s4, 0
  v_mov_b32 v1, 1.0
SPIN_L:
''' + '  v_add_f32 v2, v1, v1\n' * 50 + '''  s_add_u32 s4, s4, 1
  s_cmp_lt_u32 s4, 200
  s_cbranch_scc1 SPIN_L
  s_endpgm
'''
add('; @launch kernel=spin_kernel grid=(256,1,1) block=(64,1,1) lds=0', spin, 'spin_kernel', 'x_spin.s')

def stream(mod):
    nw, depth = 8, 16
    t = f'''stream_kernel:
  s_cmp_ge_u32 s2, 256
  s_cbranch_scc1 ST_END
  s_load_dwordx16 s[48:63], s[0:1], 0
  v_and_b32 v1, 63, v0
  v_lshrrev_b32 v2, 6, v0
  v_readfirstlane_b32 s28, v2
  v_lshlrev_b32 v1, 4, v1
  s_waitcnt lgkmcnt(0)
  s_and_b32 s3, s2, 1
  s_lshr_b32 s4, s2, 1
  s_cmp_eq_u32 s3, 0
  s_cselect_b32 s50, s50, s60
  s_cselect_b32 s51, s51, s61
  s_cselect_b32 s52, s52, s62
  s_cselect_b32 s53, s53, s63
  s_cmp_lt_u32 s28, 4
  s_cselect_b32 s8, s50, s52
  s_cselect_b32 s9, s51, s53
  s_lshl_b32 s4, s4, 18
  s_add_u32 s8, s8, s4
  s_addc_u32 s9, s9, 0
  s_mov_b32 s10, 262144
  s_mov_b32 s11, 0x00020000
  s_and_b32 s5, s28, 3
  s_lshl_b32 s12, s5, 12
  s_mul_i32 s13, s28, 16384
  s_mov_b32 s14, 0
  s_mov_b32 s15, 0
ST_LOOP:
'''
    for k in range(4):
        t += f'''  s_add_u32 m0, s13, s15
  s_add_u32 s16, s12, {1024*k}
  buffer_load_dwordx4 v1, s[8:11], s16 offen {mod} lds
  s_add_u32 s15, s15, 1024
  s_cmp_eq_u32 s15, 16384
  s_cselect_b32 s15, 0, s15
'''
    t += '''  s_waitcnt vmcnt(12)
  s_add_u32 s12, s12, 16384
  s_add_u32 s14, s14, 1
  s_cmp_lt_u32 s14, 16
  s_cbranch_scc1 ST_LOOP
  s_waitcnt vmcnt(0)
ST_END:
  s_endpgm
'''
    return t
add('; @launch kernel=stream_kernel grid=(256,1,1) block=(512,1,1) lds=131072', stream('nt'), 'stream_kernel', 'x_st_nt.s')
add('; @launch kernel=stream_kernel grid=(256,1,1) block=(512,1,1) lds=131072', stream(''), 'stream_kernel', 'x_st_pl.s')
```
